```python
import torch

def _softmax(x, axis=-1):
    return torch.softmax(x, dim=axis)
def _gelu(x):
    return torch.nn.functional.gelu(x, approximate="tanh")
def _silu(x):
    return torch.nn.functional.silu(x)
def _sigmoid(x):
    return torch.sigmoid(x)
def _layernorm(x, axis=-1, eps=1e-5):
    m = x.mean(dim=axis, keepdim=True)
    v = x.var(dim=axis, keepdim=True, unbiased=False)
    return (x - m) / torch.sqrt(v + eps)
def _scatter_add(tgt, idx, src, axis=0):
    return tgt.clone().index_add_(axis, idx, src)
def _segment_sum(src, seg, n):
    out = torch.zeros((n,) + src.shape[1:], dtype=src.dtype)
    return out.index_add_(0, seg, src)
def _pad(x, pw):
    flat = tuple(v for pair in reversed(pw) for v in pair)
    return torch.nn.functional.pad(x, flat)

kernel_name = 'gated_mix__sliding_local_dilated__dense_activation_mish__prompt'

def setup_inputs():

    _w = (lambda a: (lambda t: t.to(torch.bfloat16) if t.is_floating_point() else t)(torch.as_tensor(a)))
    def _A_setup():
        B, S, D = 1, 2048, 512
        return {
            "x": _w((lambda *s: torch.randn(*s, dtype=torch.bfloat16) * 0.05)(B, S, D)),
            "wqkv": _w((lambda *s: torch.randn(*s, dtype=torch.bfloat16) * 0.8)(D, 3 * D)),
            "wo": _w((lambda *s: torch.randn(*s, dtype=torch.bfloat16) * 0.05)(D, D)),
        }
    _A_in = _A_setup()

    def _B_setup():
        B, S, D, F = 1, 2048, 512, 1376
        return {
            "x": _w((lambda *s: torch.randn(*s, dtype=torch.bfloat16) * 0.05)(B, S, D)),
            "w1": _w((lambda *s: torch.randn(*s, dtype=torch.bfloat16) * 12.8)(D, F) * (D ** -0.5)),
            "b1": _w((lambda *s: torch.randn(*s, dtype=torch.bfloat16) * 0.8)(F)),
            "w2": _w((lambda *s: torch.randn(*s, dtype=torch.bfloat16) * 0.8)(F, D) * (F ** -0.5)),
        }
    _B_in = _B_setup()

    return {
        "A_x": _A_in["x"],
        "A_wqkv": _A_in["wqkv"],
        "A_wo": _A_in["wo"],
        "B_x": _B_in["x"],
        "B_w1": _B_in["w1"],
        "B_b1": _B_in["b1"],
        "B_w2": _B_in["w2"],
        "gate_w": _w((lambda *s: torch.randn(*s, dtype=torch.bfloat16) * 0.05)(512) * 16.0),
    }

def reference(A_x, A_wqkv, A_wo, B_x, B_w1, B_b1, B_w2, gate_w):
    def _A_ref(x, wqkv, wo):
        B, S, D = x.shape
        H = 32; Dh = D // H
        W, dil = 8, 2
        qkv = (lambda x, *d: x.permute(*d))((x @ wqkv).reshape(B, S, 3, H, Dh), 2, 0, 3, 1, 4)
        q, k, v = qkv[0], qkv[1], qkv[2]
        scale = Dh ** -0.5
        pos = torch.arange(S)
        off = torch.arange(W) * dil
        idx = pos[:, None] - off[None, :]
        mask = idx >= 0
        idx_c = torch.where(mask, idx, 0).reshape(-1)
        kg = k[:, :, idx_c, :].reshape(B, H, S, W, Dh)
        vg = v[:, :, idx_c, :].reshape(B, H, S, W, Dh)
        logits = torch.einsum("bhsd,bhswd->bhsw", q, kg) * scale
        logits = torch.where(mask[None, None, :, :], logits, -1e9)
        attn = _softmax(logits, axis=-1)
        o = torch.einsum("bhsw,bhswd->bhsd", attn, vg)
        return (lambda x, *d: x.permute(*d))(o, 0, 2, 1, 3).reshape(B, S, D) @ wo

    def _B_ref(x, w1, b1, w2):
        h = torch.einsum("bsd,df->bsf", x, w1) + b1
        sp = torch.log1p(torch.exp(-torch.abs(h))) + torch.where(h > 0, h, torch.zeros_like(h))
        act = h * torch.tanh(sp)
        return torch.einsum("bsf,fd->bsd", act, w2)

    x = A_x
    g = _sigmoid((x * gate_w).sum(-1, keepdims=True))
    a = _A_ref(x, A_wqkv, A_wo)
    b = _B_ref(x, B_w1, B_b1, B_w2)
    return g * a + (1 - g) * b
```

```python
NAME = "gated_mix__sliding_local_dilated__dense_activation_mish__prompt"

class Asm:
    def __init__(self):
        self.L = []
    def __call__(self, s=""):
        for line in s.split("\n"):
            self.L.append(line)
    def text(self):
        return "\n".join(self.L) + "\n"

def vr(base, n=1):
    return f"v{base}" if n == 1 else f"v[{base}:{base + n - 1}]"
def ar(base, n=1):
    return f"a{base}" if n == 1 else f"a[{base}:{base + n - 1}]"
def sr(base, n=1):
    return f"s{base}" if n == 1 else f"s[{base}:{base + n - 1}]"

def header(launch_lines, kernels):
    s = "\n".join(launch_lines) + "\n"
    s += '.amdgcn_target "amdgcn-amd-amdhsa--gfx950"\n.text\n'
    return s

def kernel_start(name):
    return f".globl {name}\n.p2align 8\n.type {name},@function\n{name}:\n"

def descriptor(name, vgpr, sgpr, accum):
    return f""".section .rodata,"a"
.p2align 6
.amdhsa_kernel {name}
  .amdhsa_next_free_vgpr {vgpr}
  .amdhsa_next_free_sgpr {sgpr}
  .amdhsa_accum_offset {accum}
  .amdhsa_group_segment_fixed_size 0
  .amdhsa_kernarg_size 88
  .amdhsa_user_sgpr_count 2
  .amdhsa_user_sgpr_kernarg_segment_ptr 1
  .amdhsa_system_sgpr_workgroup_id_x 1
.end_amdhsa_kernel
"""
```

```python
import re

TRANS = ("v_exp_f32", "v_log_f32", "v_rcp_f32", "v_rsq_f32", "v_sqrt_f32", "v_sin_f32", "v_cos_f32")
RMW = ("v_fmac_", "v_dot2c_", "v_pk_fmac")

def regs_of(tok):
    tok = tok.strip()
    tok = re.sub(r"^-|^abs\(|\)$", "", tok).strip()
    tok = tok.lstrip("-")
    m = re.fullmatch(r"([vas])(\d+)", tok)
    if m: return {(m.group(1), int(m.group(2)))}
    m = re.fullmatch(r"([vas])\[(\d+):(\d+)\]", tok)
    if m: return {(m.group(1), i) for i in range(int(m.group(2)), int(m.group(3)) + 1)}
    if tok == "vcc": return {("s", 106), ("s", 107)}
    if tok == "exec": return {("s", 126), ("s", 127)}
    if tok == "m0": return {("s", 124)}
    return set()

class Ins:
    def __init__(self, line):
        self.line = line
        t = line.split(";")[0].strip()
        self.label = t.endswith(":")
        self.dir = t.startswith(".")
        self.empty = (t == "")
        self.op = ""; self.ops = []
        self.dst = set(); self.src = set(); self.srcC = set(); self.srcAB = set()
        self.kind = "none"; self.passes = 0; self.states = 0
        if self.label or self.dir or self.empty: return
        parts = t.split(None, 1)
        self.op = op = parts[0]
        rest = parts[1] if len(parts) > 1 else ""
        toks = []; depth = 0; cur = ""
        for ch in rest:
            if ch == "[": depth += 1
            if ch == "]": depth -= 1
            if ch == "," and depth == 0: toks.append(cur.strip()); cur = ""
            else: cur += ch
        if cur.strip(): toks.append(cur.strip())
        if toks:
            last = toks[-1].split()
            self.mods = last[1:]; toks[-1] = last[0]
        else: self.mods = []
        self.ops = toks
        R = [regs_of(x) for x in toks]
        self.states = 1
        if op == "s_nop":
            self.kind = "nop"; self.states = int(toks[0], 0) + 1
        elif op.startswith("v_mfma"):
            self.kind = "mfma"
            self.passes = 8 if "32x32" in op else 4
            self.dst = R[0]; self.srcAB = R[1] | R[2]; self.srcC = R[3] if len(R) > 3 else set()
            self.src = self.srcAB | self.srcC
        elif op.startswith("v_permlane") and "swap" in op:
            self.kind = "perm"; self.dst = R[0] | R[1]; self.src = R[0] | R[1]
        elif op.startswith("v_cmp"):
            self.kind = "valu"; self.dst = R[0]; self.src = set().union(*R[1:]) if len(R) > 1 else set()
        elif op.startswith("v_readfirstlane") or op.startswith("v_readlane"):
            self.kind = "rdlane"; self.dst = R[0]; self.src = set().union(*R[1:])
        elif op.startswith("v_"):
            self.kind = "trans" if op.startswith(TRANS) else "valu"
            if "_dpp" in op or any(m.startswith(("row_", "quad_perm", "wave_")) for m in self.mods): self.kind = "dpp"
            self.dst = R[0]; self.src = set().union(*R[1:]) if len(R) > 1 else set()
            if op.startswith(("v_add_co", "v_sub_co", "v_addc_co", "v_subb_co")):
                self.dst = R[0] | R[1]; self.src = set().union(*R[2:])
            if op.startswith(RMW): self.src |= R[0]
            if op.startswith("v_cndmask") and len(R) == 3: self.src |= regs_of("vcc")
        elif op.startswith("ds_"):
            if op.startswith(("ds_read", "ds_bpermute", "ds_swizzle")) or "_rtn" in op:
                self.kind = "dsread"; self.dst = R[0]; self.src = set().union(*R[1:])
            else:
                self.kind = "dswrite"; self.src = set().union(*R)
        elif op.startswith(("buffer_", "global_")):
            lds = "lds" in self.mods
            st = "store" in op or ("atomic" in op and "sc0" not in self.mods)
            if op.startswith(("buffer_wb", "buffer_inv")):
                self.kind = "vmem"
            elif lds:
                self.kind = "dma"; self.src = set().union(*R) | regs_of("m0")
            elif st:
                self.kind = "store"; self.src = set().union(*R)
                self.wide = op.endswith(("x3", "x4"))
                self.data = R[0] if op.startswith("buffer_") else R[1]
            else:
                self.kind = "load"; self.dst = R[0]; self.src = set().union(*R[1:])
        elif op.startswith("s_"):
            self.kind = "salu"
            if op.startswith(("s_cbranch", "s_branch", "s_barrier", "s_waitcnt", "s_endpgm", "s_sleep", "s_setprio", "s_cmp", "s_bitcmp")):
                self.src = set().union(*R) if R else set()
            else:
                self.dst = R[0] if R else set(); self.src = set().union(*R[1:]) if len(R) > 1 else set()

VALUS = ("valu", "trans", "perm", "dpp", "rdlane")

def need(p, c):
    n = 0
    pv = {r for r in p.dst if r[0] in "va"}
    ps = {r for r in p.dst if r[0] == "s"}
    if p.kind in VALUS:
        if c.kind == "mfma" and pv & c.src: n = max(n, 2)
        if c.kind in ("perm", "dpp") and pv & c.src: n = max(n, 2)
        if c.kind == "rdlane" and pv & c.src: n = max(n, 1)
        if p.kind == "trans" and c.kind != "trans" and pv & c.src: n = max(n, 1)
        if ps:
            if c.kind in VALUS and ps & c.src: n = max(n, 4 if c.kind == "rdlane" else 2)
            if c.kind == "mfma" and ps & c.src: n = max(n, 2)
            if c.kind in ("load", "store", "dma", "vmem") and ps & c.src: n = max(n, 5)
    if p.kind == "mfma":
        big = 12 if p.passes == 8 else 8
        if c.kind == "mfma":
            if pv & c.srcAB: n = max(n, big)
            if pv & c.srcC and not (pv == c.srcC and p.passes == c.passes): n = max(n, big - 2)
            if pv & c.dst and not (pv == c.srcC and p.passes == c.passes) and not (pv & c.srcC): n = max(n, big)
        elif c.kind in VALUS:
            if pv & (c.src | c.dst): n = max(n, big)
            if p.srcC & c.dst: n = max(n, 7 if p.passes == 8 else 3)
        elif c.kind in ("load", "dsread"):
            if pv & (c.src | c.dst): n = max(n, big)
        elif c.kind in ("store", "dswrite", "dma"):
            if pv & c.src: n = max(n, big)
    if p.kind == "store" and getattr(p, "wide", False):
        if p.data & c.dst: n = max(n, 2 if c.kind in VALUS or c.kind == "mfma" else 1)
    if p.kind == "salu" and ("s", 124) in p.dst and c.kind == "dma": n = max(n, 1)
    return n

def fix(text, window=24):
    out = []
    added = 0
    for line in text.split("\n"):
        c = Ins(line)
        if c.states and c.kind != "nop":
            dist = 0; req = 0
            for p in reversed(out):
                if dist >= window: break
                if p.states:
                    k = need(p, c)
                    if k - dist > req: req = k - dist
                    dist += p.states
            while req > 0:
                k = min(req, 16)
                out.append(Ins(f"    s_nop {k - 1}")); added += 1
                req -= k
        out.append(c)
    return "\n".join(i.line for i in out), added
```

```python
import sys, os
sys.path.insert(0, os.path.dirname(os.path.abspath(__file__)))
from asmlib import *
import hazard

NW, NX, NBLK = 6, 4, 9
XBASE = NW * 12288
MISC = XBASE + NX * NBLK * 2048
LDS_BYTES = MISC + 1024
SYNC_AFTER = 3
R1 = 16
A2D = 12
KFIRST = (0, 32, 61, 90); KN = (32, 29, 29, 28)
WS_G = 0x780000; WS_FLAGS = 0x790000; WS_SIZE = 0x800000
WS_STAMP = 0x7C0000
ACC = 32; WF = 140; XF = 164
ACC2 = 32; A2R = 64; FLY = 112; B2R = 128
LOG2E = 0x3FB8AA3B
A0, AS = 6, 3

class Gen:
    def __init__(self, mode, opts):
        self.mode = mode
        self.o = opts
        self.A = Asm()
        self.lab = 0
        self.tag = mode
    def L(self, name): return f"L_{self.tag}_{name}"
    def newlab(self, base):
        self.lab += 1
        return f"L_{self.tag}_{base}{self.lab}"
    def stamp(self, idx, waves=None):
        if "stamp" in self.o:
            self.A(f"    s_memrealtime s[{86 + 2 * (idx % 8)}:{87 + 2 * (idx % 8)}]")

    def prologue(self):
        A = self.A
        A(f"""    s_cmp_ge_u32 s2, 256
    s_cbranch_scc1 {self.L('end')}""")
        self.stamp(0)
        A("""    s_load_dwordx16 s[64:79], s[0:1], 0
    s_load_dwordx4 s[80:83], s[0:1], 64
    s_load_dwordx2 s[84:85], s[0:1], 80
    v_lshrrev_b32 v1, 6, v0
    v_and_b32 v2, 63, v0
    s_and_b32 s31, s2, 7
    v_readfirstlane_b32 s30, v1          ; wave
    s_lshr_b32 s32, s2, 3                ; j5
    s_and_b32 s33, s31, 1
    s_lshl_b32 s33, s33, 3
    s_and_b32 s38, s32, 7
    s_add_u32 s33, s33, s38              ; mt
    s_lshr_b32 s34, s31, 1
    s_lshr_b32 s38, s32, 3
    s_lshl_b32 s39, s38, 2
    s_add_u32 s34, s34, s39              ; cgi
    s_lshl_b32 s40, s31, 2
    s_add_u32 s40, s40, s38              ; mt64
    s_and_b32 s41, s32, 7                ; nt
    s_lshr_b32 s35, s34, 3
    s_and_b32 s36, s30, 3                ; j
    s_lshr_b32 s37, s36, 1               ; jb
    v_lshlrev_b32 v16, 4, v2             ; lane*16
    v_and_b32 v4, 15, v2                 ; p
    v_lshrrev_b32 v5, 2, v4              ; a
    v_lshrrev_b32 v6, 5, v2              ; g'
    v_lshl_add_u32 v6, v6, 3, v5         ; 8g'+a
    v_lshlrev_b32 v6, 7, v6              ; row*128
    v_bfe_u32 v7, v2, 4, 1               ; colhalf
    v_bfe_u32 v8, v4, 1, 1               ; c1
    v_lshl_add_u32 v7, v7, 1, v8         ; 2*colhalf+c1
    v_and_b32 v8, 2, v5
    v_lshlrev_b32 v8, 1, v8              ; 4*bit1(a)
    v_xor_b32 v7, v7, v8
    v_lshl_add_u32 v6, v7, 4, v6
    v_and_b32 v8, 1, v4
    v_lshl_add_u32 v6, v8, 3, v6
    s_lshl_b32 s38, s36, 15              ; j*32768
    v_add_u32 v17, s38, v6
    v_xor_b32 v18, 64, v17
    s_waitcnt lgkmcnt(0)
    s_mov_b32 s4, s64
    s_mov_b32 s5, s65
    s_mov_b32 s6, 0x200000
    s_mov_b32 s7, 0x20000
    s_cmp_eq_u32 s35, 0
    s_cselect_b32 s8, s66, s72
    s_cselect_b32 s9, s67, s73
    s_mov_b32 s10, 0x158000
    s_cselect_b32 s10, 0x180000, s10
    s_mov_b32 s11, 0x20000
    s_cmp_eq_u32 s36, 0
    s_cselect_b32 s12, s68, s76
    s_cselect_b32 s13, s69, s77
    s_mov_b32 s14, 0x158000
    s_cselect_b32 s14, 0x80000, s14
    s_mov_b32 s15, 0x20000
    s_mov_b32 s16, s84
    s_mov_b32 s17, s85
    s_mov_b32 s18, 0x800000
    s_mov_b32 s19, 0x20000
    s_mov_b32 s20, s80
    s_mov_b32 s21, s81
    s_mov_b32 s22, 0x200000
    s_mov_b32 s23, 0x20000
    s_mov_b32 s28, s82
    s_mov_b32 s29, s83
    s_sub_u32 s38, s36, 1
    s_mul_i32 s60, s38, 475136           ; (j-1)*29*16384
    s_cmp_eq_u32 s36, 0
    s_cselect_b32 s60, 0, s60
    s_lshl_b32 s38, s41, 7
    s_add_u32 s60, s60, s38              ; + nt*128
    s_lshl_b32 s61, s36, 15
    s_lshr_b32 s38, s30, 2               ; th2
    s_lshl_b32 s39, s40, 1
    s_add_u32 s39, s39, s38
    s_mul_i32 s62, s39, 118
    s_mul_i32 s38, s36, 29
    s_add_u32 s38, s38, 3                ; 32,61,90 for j=1..3
    s_cmp_eq_u32 s36, 0
    s_cselect_b32 s38, 0, s38
    s_add_u32 s62, s62, s38
    s_lshl_b32 s62, s62, 10""")

    def dma_seq(self):
        seq = []
        for s in range(16):
            ew = -1 if s < NW else s - NW + 1
            seq += [(ew, ("w", s, seg)) for seg in range(3)]
            if s % 2 == 0:
                c = s // 2
                e = -1 if c < NX else 2 * (c - NX + 1) + 1
                seq += [(e, ("h", c, 0))] + [(e, ("x", c, m)) for m in range(4)]
        return seq
    def emit_dma(self, op):
        A = self.A
        kind, a, b = op
        if kind == "w":
            s, seg = a, b
            A(f"    s_add_u32 m0, s47, {(s % NW) * 12288 + seg * 4096}")
            if seg == 0:
                A(f"    s_mov_b32 s46, s42")
            else:
                A(f"    s_add_u32 s46, s42, s{42 + seg}")
            A(f"    buffer_load_dwordx4 v10, s[8:11], s46 offen lds")
            if seg == 2: A("    s_add_u32 s42, s42, s45")
        elif kind == "h":
            c = a
            l = self.newlab("nohalo")
            A(f"    s_cbranch_vccz {l}")
            A(f"    s_add_u32 m0, s50, {XBASE + (c % NX) * NBLK * 2048 - 2048}")
            A(f"    s_add_u32 s46, s48, {c * 128}")
            A(f"    buffer_load_dwordx4 v11, s[4:7], s46 offen lds")
            A(l + ":")
        else:
            c, m = a, b
            A(f"    s_add_u32 m0, s50, {XBASE + (c % NX) * NBLK * 2048 + 2 * m * 2048}")
            A(f"    s_add_u32 s46, s49, {c * 128 + 2 * m * 16384}")
            A(f"    buffer_load_dwordx4 v11, s[4:7], s46 offen lds")
    def loader_setup(self):
        self.A("""    v_lshrrev_b32 v3, 3, v2              ; rho
    v_and_b32 v4, 7, v2                  ; pos
    s_cmp_eq_u32 s35, 0
    s_mov_b32 s51, 2752
    s_cselect_b32 s51, 3072, s51
    s_mov_b32 s43, 128
    s_cselect_b32 s43, 1024, s43
    s_lshl_b32 s44, s43, 1
    s_lshl_b32 s45, s51, 5               ; 32 rows
    s_and_b32 s38, s34, 7
    s_cmp_eq_u32 s35, 0
    s_mov_b32 s39, 384
    s_cselect_b32 s39, 128, s39
    s_mul_i32 s42, s38, s39
    v_and_b32 v5, 2, v3
    v_xor_b32 v5, v5, v4
    s_and_b32 s38, s36, 1                ; h
    s_lshl_b32 s39, s38, 2
    v_xor_b32 v5, s39, v5
    v_lshlrev_b32 v5, 4, v5
    s_lshl_b32 s39, s36, 3
    v_add_u32 v6, s39, v3
    v_mad_u32_u24 v10, v6, s51, v5       ; W voffset
    s_lshl_b32 s39, s38, 3
    v_add_u32 v6, s39, v3                ; r = 8h+rho
    v_lshrrev_b32 v5, 1, v6
    v_xor_b32 v5, v5, v4
    v_and_b32 v5, 7, v5
    v_lshlrev_b32 v5, 4, v5
    v_lshl_add_u32 v11, v6, 10, v5       ; x voffset
    s_lshl_b32 s47, s36, 10
    s_lshl_b32 s39, s33, 17
    s_sub_u32 s48, s39, 16384
    s_max_i32 s48, s48, 0
    s_lshl_b32 s49, s37, 14
    s_add_u32 s49, s49, s39
    s_lshl_b32 s50, s37, 11
    s_lshl_b32 s39, s38, 10
    s_add_u32 s50, s50, s39
    s_add_u32 s50, s50, 2048
    s_or_b32 s39, s35, s37
    s_cmp_eq_u32 s39, 0
    s_cselect_b64 vcc, -1, 0""")
    def b2_setup(self):
        self.A("""    v_lshrrev_b32 v3, 3, v2
    v_and_b32 v4, 7, v2
    v_and_b32 v5, 2, v3
    v_lshlrev_b32 v5, 1, v5
    v_xor_b32 v5, v5, v4
    v_lshlrev_b32 v5, 4, v5
    v_lshl_add_u32 v12, v3, 10, v5       ; B2 voffset""")
    def gate_issue(self):
        self.A("""    s_lshl_b32 s38, s33, 7
    s_lshl_b32 s39, s34, 3
    s_add_u32 s38, s38, s39
    s_lshl_b32 s39, s36, 1
    s_add_u32 s63, s38, s39
    s_lshl_b32 s46, s63, 10
    s_mov_b32 s24, s78
    s_mov_b32 s25, s79
    s_mov_b32 s26, 1024
    s_mov_b32 s27, 0x20000
    buffer_load_dwordx4 v[20:23], v16, s[24:27], 0 offen
    buffer_load_dwordx4 v[24:27], v16, s[4:7], s46 offen
    buffer_load_dwordx4 v[28:31], v16, s[4:7], s46 offen offset:1024""")
    def gate_compute(self):
        A = self.A
        A("    v_mov_b32 v32, 0\n    v_mov_b32 v33, 0")
        for i in range(4):
            A(f"    v_lshlrev_b32 v34, 16, v{20 + i}")
            A(f"    v_and_b32 v35, 0xffff0000, v{20 + i}")
            for t in range(2):
                A(f"    v_lshlrev_b32 v36, 16, v{24 + 4 * t + i}")
                A(f"    v_and_b32 v37, 0xffff0000, v{24 + 4 * t + i}")
                A(f"    v_fmac_f32 v{32 + t}, v34, v36")
                A(f"    v_fmac_f32 v{32 + t}, v35, v37")
        for r in (8, 4, 2, 1):
            for t in range(2):
                A(f"    v_add_f32_dpp v{32 + t}, v{32 + t}, v{32 + t} row_ror:{r} row_mask:0xf bank_mask:0xf")
        for sw in ("16", "32"):
            for t in range(2):
                A(f"    v_mov_b32 v{34 + t}, v{32 + t}")
            for t in range(2):
                A(f"    v_permlane{sw}_swap_b32 v{32 + t}, v{34 + t}")
            for t in range(2):
                A(f"    v_add_f32 v{32 + t}, v{32 + t}, v{34 + t}")
        A(f"""    v_and_b32 v34, 1, v2
    v_cmp_eq_u32 vcc, 1, v34
    s_mov_b32 s38, {LOG2E}
    v_cndmask_b32 v32, v32, v33, vcc
    v_mul_f32 v32, s38, v32
    v_exp_f32 v32, -v32
    v_add_f32 v32, 1.0, v32
    v_rcp_f32 v32, v32
    s_lshl_b32 s46, s63, 2
    s_add_u32 s46, s46, {WS_G}
    v_lshlrev_b32 v34, 2, v2
    s_mov_b64 exec, 3
    buffer_store_dword v32, v34, s[16:19], s46 offen sc1
    s_mov_b64 exec, -1""")
    def loader_k(self):
        A = self.A
        seq = self.dma_seq()
        def need_last(s):
            last = -1
            for i, (e, op) in enumerate(seq):
                if op[0] == "w" and op[1] <= s: last = i
                if op[0] in "xh" and op[1] <= s // 2: last = i
            return last
        issued = 0
        for s in range(16):
            tgt = min(len(seq), need_last(s) + 1 + A0 + AS * s)
            while issued < tgt and seq[issued][0] <= s - 1:
                self.emit_dma(seq[issued][1]); issued += 1
            last = need_last(s)
            assert issued > last
            after = [op for e, op in seq[last + 1:issued] if op[0] != "h"]
            A(f"    s_waitcnt vmcnt({len(after)})")
            A("    s_barrier")
            if s == 1:
                A("    s_mov_b64 s[56:57], vcc")
                self.gate_compute()
                A("    s_mov_b64 vcc, s[56:57]")
        assert issued == len(seq)
    def b2_stage(self, t0, t1, cond_tail):
        A = self.A
        for t in range(t0, t1):
            l = None
            if cond_tail and t >= 28:
                l = self.newlab("b2skip")
                A(f"    s_cmp_ge_u32 s36, {3 if t == 28 else 1}")
                A(f"    s_cbranch_scc1 {l}")
            for hh in range(2):
                A(f"    s_add_u32 m0, s61, {(t - t0) * 2048 + hh * 1024}")
                A(f"    s_add_u32 s46, s60, {(16 * t + 8 * hh) * 1024}")
                A(f"    buffer_load_dwordx4 v12, s[12:15], s46 offen lds")
            if l: A(l + ":")
    def b2_read_regs(self):
        A = self.A
        for t in range(R1):
            for nb in range(2):
                for b in range(2):
                    A(f"    ds_read_b64_tr_b16 {vr(B2R + 8 * t + 4 * nb + 2 * b, 2)}, v{17 + nb} offset:{t * 2048 + b * 512}")
            if t % 3 == 2: A("    s_waitcnt lgkmcnt(4)")
        A("    s_waitcnt lgkmcnt(0)")

    def mfma_setup(self):
        self.A(f"""    v_lshrrev_b32 v3, 4, v2              ; g
    v_and_b32 v4, 15, v2                 ; p / r
    v_lshrrev_b32 v5, 2, v4              ; a
    v_and_b32 v6, 2, v5
    v_bfe_u32 v7, v4, 1, 1
    s_lshl_b32 s38, s36, 1
    v_or_b32 v7, s38, v7
    v_xor_b32 v7, v7, v6
    v_and_b32 v6, 1, v3
    v_lshlrev_b32 v6, 2, v6
    v_xor_b32 v7, v7, v6
    v_lshlrev_b32 v7, 4, v7
    v_and_b32 v6, 1, v4
    v_lshl_add_u32 v7, v6, 3, v7
    v_lshl_add_u32 v7, v5, 7, v7
    v_lshl_add_u32 v10, v3, 10, v7
    v_add_u32 v11, 61440, v10            ; slot 5
    v_lshrrev_b32 v5, 1, v4
    v_xor_b32 v5, v5, v3
    v_lshlrev_b32 v5, 4, v5
    v_lshl_add_u32 v5, v4, 7, v5
    v_add_u32 v12, {XBASE}, v5
    v_xor_b32 v13, 64, v12               ; t=1
    v_add_u32 v14, {2 * NBLK * 2048}, v12
    v_add_u32 v15, {2 * NBLK * 2048}, v13""")
    def waddr(self, s, seg, b):
        slot = s % NW
        off = slot * 12288 + seg * 4096 + b * 512
        return f"v10 offset:{off}" if slot < 5 else f"v11 offset:{off - 61440}"
    def xaddr(self, s, blk):
        c, t = s // 2, s % 2
        slot = c % NX
        base = (12 + t) if slot < 2 else (14 + t)
        return f"v{base} offset:{(slot % 2) * NBLK * 2048 + blk * 2048}"
    def mfma_k(self, ffn):
        A = self.A
        blocks = list(range(1, 9)) if ffn else list(range(0, 9))
        nb = len(blocks)
        lg = []
        def rd_w(s, u, b):
            A(f"    ds_read_b64_tr_b16 {vr(WF + (s % 2) * 12 + u * 4 + b * 2, 2)}, {self.waddr(s, u, b)}")
            lg.append(("w", s, u))
        def rd_x(s, i):
            n = s * nb + i
            A(f"    ds_read_b128 {vr(XF + (n % 4) * 4, 4)}, {self.xaddr(s, blocks[i])}")
            lg.append(("x", s, i))
        def wait_for(tags):
            idx = -1
            for i, tg in enumerate(lg):
                if tg in tags: idx = i
            if idx >= 0:
                A(f"    s_waitcnt lgkmcnt({min(len(lg) - 1 - idx, 15)})")
                del lg[:idx + 1]
        A("    s_barrier")
        for u in range(3):
            rd_w(0, u, 0); rd_w(0, u, 1)
        for i in range(3): rd_x(0, i)
        if ffn: A("    s_waitcnt vmcnt(0)"); self.bias_unpack()
        for s in range(16):
            for i in range(nb):
                blk = blocks[i]
                n = s * nb + i
                tags = [("x", s, i)]
                if i == 0: tags += [("w", s, 0), ("w", s, 1), ("w", s, 2)]
                wait_for(tags)
                X = vr(XF + (n % 4) * 4, 4)
                units = (1, 2) if (blk == 0) else (0, 1, 2)
                for k, u in enumerate(units):
                    acc = vr(ACC + (blk * 3 + u) * 4, 4)
                    W = vr(WF + (s % 2) * 12 + u * 4, 4)
                    c = acc if s > 0 else (vr(ACC + 4 * u, 4) if ffn else "0")
                    if ffn or u < 2: A(f"    v_mfma_f32_16x16x32_bf16 {acc}, {W}, {X}, {c}")
                    else:            A(f"    v_mfma_f32_16x16x32_bf16 {acc}, {X}, {W}, {c}")
                    if k == 0:
                        s2, i2 = (s, i + 3) if i + 3 < nb else (s + 1, i + 3 - nb)
                        if s2 < 16: rd_x(s2, i2)
                    if k == 1 and s + 1 < 16 and SYNC_AFTER < i <= SYNC_AFTER + 3:
                        uu = i - SYNC_AFTER - 1
                        rd_w(s + 1, uu, 0); rd_w(s + 1, uu, 1)
                if i == SYNC_AFTER and s + 1 < 16:
                    A("    s_barrier")
    def bias_issue(self):
        self.A("""    s_mov_b32 s24, s74
    s_mov_b32 s25, s75
    s_mov_b32 s26, 2752
    s_mov_b32 s27, 0x20000
    s_and_b32 s38, s34, 7
    s_mul_i32 s38, s38, 12
    s_add_u32 s38, s38, s36              ; U for u = 0
    s_lshl_b32 s46, s38, 5
    v_lshrrev_b32 v3, 4, v2
    v_lshlrev_b32 v3, 3, v3              ; 8*g bytes
    buffer_load_dwordx2 v[20:21], v3, s[24:27], s46 offen
    buffer_load_dwordx2 v[22:23], v3, s[24:27], s46 offen offset:128
    buffer_load_dwordx2 v[24:25], v3, s[24:27], s46 offen offset:256""")
    def bias_unpack(self):
        for u in range(3):
            for h in range(2):
                self.A(f"    v_lshlrev_b32 v{ACC + 4 * u + 2 * h}, 16, v{20 + 2 * u + h}")
                self.A(f"    v_and_b32 v{ACC + 4 * u + 2 * h + 1}, 0xffff0000, v{20 + 2 * u + h}")

    def store_a2(self, data, pair, kofs):
        self.A(f"    s_add_u32 s46, s58, {(pair * 118 + kofs) * 1024}")
        self.A(f"    buffer_store_dwordx4 {vr(data, 4)}, v16, s[16:19], s46 offen sc1")

    def att_epilogue(self):
        A = self.A
        VP = 180; OUTP = 140
        MC0, MC1, MP0, MP1, B0, B1, ONES = 20, 21, 22, 23, 24, 25, 26
        A(f"""    v_lshrrev_b32 v3, 4, v2              ; g
    v_and_b32 v4, 15, v2                 ; query r
    v_and_b32 v5, 1, v4
    v_cmp_eq_u32 s[52:53], 1, v5
    v_lshl_add_u32 v6, v3, 2, v5
    v_add_u32 v7, 2, v6
    v_cmp_le_u32 s[54:55], v6, v4
    v_cmp_le_u32 s[56:57], v7, v4
    v_mov_b32 v8, 0xffff
    v_mov_b32 v9, 0xffff0000
    v_cndmask_b32 v8, v8, v9, s[52:53]
    v_cndmask_b32 v{MC0}, 0, v8, s[54:55]
    v_cndmask_b32 v{MC1}, 0, v8, s[56:57]
    v_cndmask_b32 v{MP0}, v8, 0, s[54:55]
    v_cndmask_b32 v{MP1}, v8, 0, s[56:57]
    s_cmp_eq_u32 s33, 0
    s_cselect_b32 s38, 0xff7fffff, 0
    v_mov_b32 v9, s38
    v_cndmask_b32 v{B0}, v9, 0, s[54:55]
    v_cndmask_b32 v{B1}, v9, 0, s[56:57]
    v_mov_b32 v{ONES}, 0x3f803f80
    v_mov_b32 v{ONES + 1}, 0x3f803f80
    v_mov_b32 v{ONES + 2}, 0x3f803f80
    v_mov_b32 v{ONES + 3}, 0x3f803f80
    s_mov_b32 s59, 0x3eb8aa3b            ; 0.25 * log2(e)
    s_and_b32 s38, s34, 7
    s_lshl_b32 s38, s38, 2
    s_add_u32 s38, s38, s36
    s_mul_i32 s58, s33, 472
    s_add_u32 s58, s58, s38
    s_lshl_b32 s58, s58, 10""")
        def kreg(b): return ACC + (b * 3 + 1) * 4
        def pack_kv(b):
            k = kreg(b); v = ACC + (b * 3 + 2) * 4
            return [f"    v_cvt_pk_bf16_f32 v{k}, v{k}, v{k + 1}",
                    f"    v_cvt_pk_bf16_f32 v{k + 1}, v{k + 2}, v{k + 3}",
                    f"    v_cvt_pk_bf16_f32 v{VP + 2 * b}, v{v}, v{v + 1}",
                    f"    v_cvt_pk_bf16_f32 v{VP + 2 * b + 1}, v{v + 2}, v{v + 3}"]
        for line in pack_kv(0): A(line)
        def block_stream(b, T):
            q = ACC + b * 12
            Qp, SC, SP, P, O, SUM = T, T + 2, T + 6, T + 10, T + 14, T + 18
            a0, a1, m, t = T + 22, T + 23, T + 24, T + 25
            op = OUTP + 4 * ((b - 1) // 2) + 2 * ((b - 1) % 2)
            S = []
            S += [f"    v_cvt_pk_bf16_f32 v{Qp}, v{q}, v{q + 1}", f"    v_cvt_pk_bf16_f32 v{Qp + 1}, v{q + 2}, v{q + 3}"]
            S += pack_kv(b)
            S += [f"    v_mfma_f32_16x16x16_bf16 {vr(SC, 4)}, {vr(kreg(b), 2)}, {vr(Qp, 2)}, 0",
                  f"    v_mfma_f32_16x16x16_bf16 {vr(SP, 4)}, {vr(kreg(b - 1), 2)}, {vr(Qp, 2)}, 0"]
            S += [f"    v_cndmask_b32 v{SC}, v{SC}, v{SC + 1}, s[52:53]",
                  f"    v_cndmask_b32 v{SC + 2}, v{SC + 2}, v{SC + 3}, s[52:53]",
                  f"    v_cndmask_b32 v{SP}, v{SP}, v{SP + 1}, s[52:53]",
                  f"    v_cndmask_b32 v{SP + 2}, v{SP + 2}, v{SP + 3}, s[52:53]",
                  f"    v_cndmask_b32 v{a0}, v{SP}, v{SC}, s[54:55]",
                  f"    v_cndmask_b32 v{a1}, v{SP + 2}, v{SC + 2}, s[56:57]"]
            if b == 1:
                S += [f"    v_add_f32 v{a0}, v{a0}, v{B0}", f"    v_add_f32 v{a1}, v{a1}, v{B1}"]
            S += [f"    v_max_f32 v{m}, v{a0}, v{a1}",
                  f"    v_mov_b32 v{t}, v{m}",
                  f"    v_permlane16_swap_b32 v{m}, v{t}",
                  f"    v_max_f32 v{m}, v{m}, v{t}",
                  f"    v_mov_b32 v{t}, v{m}",
                  f"    v_permlane32_swap_b32 v{m}, v{t}",
                  f"    v_max_f32 v{m}, v{m}, v{t}",
                  f"    v_mul_f32 v{m}, s59, v{m}",
                  f"    v_fma_f32 v{a0}, v{a0}, s59, -v{m}",
                  f"    v_fma_f32 v{a1}, v{a1}, s59, -v{m}",
                  f"    v_exp_f32 v{a0}, v{a0}",
                  f"    v_exp_f32 v{a1}, v{a1}",
                  f"    v_cvt_pk_bf16_f32 v{a0}, v{a0}, v{a0}",
                  f"    v_cvt_pk_bf16_f32 v{a1}, v{a1}, v{a1}",
                  f"    v_and_b32 v{P}, v{a0}, v{MP0}",
                  f"    v_and_b32 v{P + 1}, v{a1}, v{MP1}",
                  f"    v_and_b32 v{P + 2}, v{a0}, v{MC0}",
                  f"    v_and_b32 v{P + 3}, v{a1}, v{MC1}",
                  f"    v_mfma_f32_16x16x32_bf16 {vr(SUM, 4)}, {vr(ONES, 4)}, {vr(P, 4)}, 0",
                  f"    v_mfma_f32_16x16x32_bf16 {vr(O, 4)}, {vr(VP + 2 * (b - 1), 4)}, {vr(P, 4)}, 0",
                  f"    v_rcp_f32 v{SUM}, v{SUM}",
                  f"    v_mul_f32 v{O}, v{O}, v{SUM}",
                  f"    v_mul_f32 v{O + 1}, v{O + 1}, v{SUM}",
                  f"    v_mul_f32 v{O + 2}, v{O + 2}, v{SUM}",
                  f"    v_mul_f32 v{O + 3}, v{O + 3}, v{SUM}",
                  f"    v_cvt_pk_bf16_f32 v{op}, v{O}, v{O + 1}",
                  f"    v_cvt_pk_bf16_f32 v{op + 1}, v{O + 2}, v{O + 3}"]
            return S
        for pair in range(4):
            b = 2 * pair + 1
            s1 = block_stream(b, 200); s2 = block_stream(b + 1, 226)
            lag = 8
            out = []
            i = j = 0
            while i < len(s1) or j < len(s2):
                if i < len(s1): out.append(s1[i]); i += 1
                if (i >= lag or i >= len(s1)) and j < len(s2): out.append(s2[j]); j += 1
            for line in out: A(line)
            op = OUTP + 4 * pair
            A(f"    v_permlane16_swap_b32 v{op}, v{op + 2}")
            A(f"    v_permlane16_swap_b32 v{op + 1}, v{op + 3}")
            self.store_a2(op, pair, 0)

    def ffn_epilogue(self):
        A = self.A
        A(f"""    s_mov_b32 s52, {LOG2E}
    s_and_b32 s38, s34, 7
    s_mul_i32 s38, s38, 12
    s_add_u32 s57, s38, s36
    s_mul_i32 s58, s33, 472
    s_add_u32 s58, s58, s57
    s_add_u32 s58, s58, 32
    s_lshl_b32 s58, s58, 10""")
        T0 = 140
        g = 0
        for u in range(3):
            skip = self.newlab("ffnskip")
            A(f"    s_cmp_ge_u32 s57, {86 - 4 * u}")
            A(f"    s_cbranch_scc1 {skip}")
            for pair in range(4):
                T = T0 + 24 * (g % 2); P = T + 8; OUT = T + 16
                g += 1
                h = [ACC + ((2 * pair + 1 + (k >> 1)) * 3 + u) * 4 + 2 * (k & 1) for k in range(4)]
                for k in range(4): A(f"    v_pk_mul_f32 {vr(T + 2 * k, 2)}, {vr(h[k], 2)}, s[52:53] op_sel_hi:[1,0]")
                for k in range(8): A(f"    v_exp_f32 v{T + k}, v{T + k}")
                for k in range(4): A(f"    v_pk_add_f32 {vr(P + 2 * k, 2)}, {vr(T + 2 * k, 2)}, 2.0 op_sel_hi:[1,0]")
                for k in range(4): A(f"    v_pk_fma_f32 {vr(P + 2 * k, 2)}, {vr(T + 2 * k, 2)}, {vr(P + 2 * k, 2)}, 2.0 op_sel_hi:[1,1,0]")
                for k in range(8): A(f"    v_rcp_f32 v{P + k}, v{P + k}")
                for k in range(4): A(f"    v_pk_fma_f32 {vr(P + 2 * k, 2)}, {vr(P + 2 * k, 2)}, -2.0, 1.0 op_sel_hi:[1,0,0]")
                for k in range(4): A(f"    v_pk_mul_f32 {vr(P + 2 * k, 2)}, {vr(h[k], 2)}, {vr(P + 2 * k, 2)}")
                for k in range(4): A(f"    v_cvt_pk_bf16_f32 v{OUT + k}, v{P + 2 * k}, v{P + 2 * k + 1}")
                A(f"    v_permlane16_swap_b32 v{OUT}, v{OUT + 2}")
                A(f"    v_permlane16_swap_b32 v{OUT + 1}, v{OUT + 3}")
                self.store_a2(OUT, pair, 4 * u)
            A(skip + ":")

    def phase2(self):
        A = self.A
        A(f"""    s_lshr_b32 s38, s30, 2
    s_lshl_b32 s39, s40, 1
    s_add_u32 s39, s39, s38              ; mt32
    s_lshl_b32 s46, s39, 7
    s_add_u32 s46, s46, {WS_G}
    v_and_b32 v3, 31, v2
    v_lshlrev_b32 v3, 2, v3
    buffer_load_dword v19, v3, s[16:19], s46 offen sc1""")
        def a2_issue(t):
            if t >= 28:
                A(f"    s_add_u32 s46, s62, {t * 1024}")
                A(f"    s_cmp_ge_u32 s36, {3 if t == 28 else 1}")
                A(f"    s_cselect_b32 s46, 0x7ff00000, s46")
            else:
                A(f"    s_add_u32 s46, s62, {t * 1024}")
            A(f"    buffer_load_dwordx4 {vr(A2R + 4 * (t % A2D), 4)}, v16, s[16:19], s46 offen sc1")
        lg = []
        def fly_read(t):
            for nb in range(2):
                for b in range(2):
                    A(f"    ds_read_b64_tr_b16 {vr(FLY + 8 * (t % 2) + 4 * nb + 2 * b, 2)}, v{17 + nb} offset:{(t - R1) * 2048 + b * 512}")
        for t in range(A2D): a2_issue(t)
        done = self.L("p2done")
        for t in range(32):
            if t >= 28 and t <= 29:
                A(f"    s_cmp_ge_u32 s36, {3 if t == 28 else 1}")
                A(f"    s_cbranch_scc1 {done}")
            rem = min(A2D - 1, 31 - t)
            A(f"    s_waitcnt vmcnt({rem})")
            if t >= R1: A(f"    s_waitcnt lgkmcnt({4 if t + 1 < 32 and False else 0})")
            if t + 1 >= R1 and t + 1 < 32 and t + 1 > R1 - 1:
                pass
            for nb in range(2):
                Bf = vr(B2R + 8 * t + 4 * nb, 4) if t < R1 else vr(FLY + 8 * (t % 2) + 4 * nb, 4)
                acc = vr(ACC2 + 16 * nb, 16)
                A(f"    v_mfma_f32_32x32x16_bf16 {acc}, {Bf}, {vr(A2R + 4 * (t % A2D), 4)}, {acc if t else 0}")
                if nb == 0 and t + 1 >= R1 and t + 1 < 32: fly_read(t + 1)
            if t + A2D < 32: a2_issue(t + A2D)
        A(done + ":")
        A("""    s_waitcnt vmcnt(0) lgkmcnt(0)
    v_sub_f32 v3, 1.0, v19
    s_cmp_eq_u32 s36, 0
    s_cselect_b64 vcc, -1, 0
    s_nop 1
    v_cndmask_b32 v19, v3, v19, vcc
    s_nop 7""")
        for i in range(32): A(f"    v_mul_f32 v{ACC2 + i}, v{ACC2 + i}, v19")
        FIN = 64
        A("""    s_barrier
    s_lshr_b32 s38, s30, 2
    s_lshl_b32 s38, s38, 15              ; th2*32768
    s_lshl_b32 s39, s36, 11              ; src = j
    s_add_u32 s39, s39, s38
    v_add_u32 v3, s39, v16""")
        for r in range(4):
            own = self.newlab("own"); nxt = self.newlab("nxt")
            A(f"    s_cmp_eq_u32 s36, {r}")
            A(f"    s_cbranch_scc1 {own}")
            A(f"    ds_write_b128 v3, {vr(ACC2 + 8 * r, 4)} offset:{r * 8192}")
            A(f"    ds_write_b128 v3, {vr(ACC2 + 8 * r + 4, 4)} offset:{r * 8192 + 1024}")
            A(f"    s_branch {nxt}")
            A(own + ":")
            for i in range(8): A(f"    v_mov_b32 v{FIN + i}, v{ACC2 + 8 * r + i}")
            A(nxt + ":")
        A("""    s_lshl_b32 s39, s36, 13              ; dest = j
    s_add_u32 s38, s38, s39
    s_add_u32 s39, s36, 1
    s_and_b32 s39, s39, 3
    s_lshl_b32 s39, s39, 11
    s_add_u32 s39, s39, s38
    v_add_u32 v4, s39, v16
    s_add_u32 s39, s36, 2
    s_and_b32 s39, s39, 3
    s_lshl_b32 s39, s39, 11
    s_add_u32 s39, s39, s38
    v_add_u32 v5, s39, v16
    s_add_u32 s39, s36, 3
    s_and_b32 s39, s39, 3
    s_lshl_b32 s39, s39, 11
    s_add_u32 s39, s39, s38
    v_add_u32 v6, s39, v16
    s_waitcnt lgkmcnt(0)
    s_barrier""")
        for d in range(3):
            A(f"    ds_read_b128 {vr(72 + 8 * d, 4)}, v{4 + d}")
            A(f"    ds_read_b128 {vr(76 + 8 * d, 4)}, v{4 + d} offset:1024")
        A("""    s_lshl_b32 s38, s40, 6
    s_lshr_b32 s39, s30, 2
    s_lshl_b32 s39, s39, 5
    s_add_u32 s38, s38, s39
    s_lshl_b32 s38, s38, 10
    s_lshl_b32 s39, s41, 7
    s_add_u32 s38, s38, s39
    s_lshl_b32 s39, s36, 5
    s_add_u32 s46, s38, s39
    v_and_b32 v3, 31, v2
    v_lshlrev_b32 v3, 10, v3
    v_lshrrev_b32 v7, 5, v2
    v_lshl_add_u32 v3, v7, 4, v3""")
        for d in range(3):
            A(f"    s_waitcnt lgkmcnt({4 - 2 * d})")
            for i in range(8): A(f"    v_add_f32 v{FIN + i}, v{FIN + i}, v{72 + 8 * d + i}")
        for i in range(4): A(f"    v_cvt_pk_bf16_f32 v{100 + i}, v{FIN + 2 * i}, v{FIN + 2 * i + 1}")
        A("    v_permlane32_swap_b32 v100, v102")
        A("    v_permlane32_swap_b32 v101, v103")
        A("    buffer_store_dwordx4 v[100:103], v3, s[20:23], s46 offen")

    def nonce_publish(self):
        l = self.newlab("nononce")
        self.A(f"""    s_cmp_lg_u32 s2, 0
    s_cbranch_scc1 {l}
    s_cmp_lg_u32 s30, 4
    s_cbranch_scc1 {l}
    s_memrealtime s[52:53]
    s_waitcnt lgkmcnt(0)
    s_or_b32 s52, s52, 1
    v_mov_b32 v3, s52
    v_mov_b32 v4, 0
    s_mov_b64 exec, 1
    global_store_dword v4, v3, s[28:29] sc1
    s_mov_b64 exec, -1
{l}:""")
    def nonce_fetch(self):
        l = self.newlab("nn"); p = self.newlab("np")
        self.A(f"""    s_cmp_lg_u32 s30, 4
    s_cbranch_scc1 {l}
    v_mov_b32 v4, 0
{p}:
    global_load_dword v3, v4, s[28:29] sc1
    s_waitcnt vmcnt(0)
    v_readfirstlane_b32 s38, v3
    s_cmp_eq_u32 s38, 0
    s_cbranch_scc1 {p}
    v_mov_b32 v4, {MISC}
    v_mov_b32 v5, 0
    ds_write_b32 v4, v3
    ds_write_b32 v4, v5 offset:4
    s_waitcnt lgkmcnt(0)
{l}:""")
    def signal(self):
        l = self.newlab("nosig")
        self.A(f"""    s_waitcnt vmcnt(0)
    v_mov_b32 v4, {MISC}
    v_mov_b32 v5, 1
    s_mov_b64 exec, 1
    ds_add_rtn_u32 v6, v4, v5 offset:4
    ds_read_b32 v7, v4
    s_waitcnt lgkmcnt(0)
    s_mov_b64 exec, -1
    v_readfirstlane_b32 s38, v6
    v_readfirstlane_b32 s55, v7          ; nonce
    s_cmp_lg_u32 s38, 3
    s_cbranch_scc1 {l}
    s_lshl_b32 s38, s33, 11              ; 16*mt*128
    s_lshl_b32 s39, s34, 2
    s_add_u32 s46, s38, s39
    s_add_u32 s46, s46, {WS_FLAGS}
    v_lshlrev_b32 v4, 7, v2
    v_mov_b32 v5, s55
    s_mov_b64 exec, 0xffff
    buffer_store_dword v5, v4, s[16:19], s46 offen sc1
    s_mov_b64 exec, -1
{l}:""")
    def poll(self):
        l = self.newlab("nopoll"); p = self.newlab("poll")
        self.A(f"""    s_cmp_lg_u32 s30, 0
    s_cbranch_scc1 {l}
    s_lshl_b32 s38, s40, 3
    s_add_u32 s38, s38, s41
    s_lshl_b32 s38, s38, 7
    s_add_u32 s46, s38, {WS_FLAGS}
    v_and_b32 v4, 15, v2
    v_lshlrev_b32 v4, 2, v4
{p}:
    buffer_load_dword v3, v4, s[16:19], s46 offen sc1
    s_waitcnt vmcnt(0)
    v_cmp_ne_u32 vcc, s55, v3
    s_nop 1
    s_cmp_eq_u64 vcc, 0
    s_cbranch_scc0 {p}
{l}:""")

    def build(self, name):
        A = self.A
        mode = self.mode
        A(kernel_start(name))
        self.prologue()
        A(f"    s_cmp_lt_u32 s30, 4")
        A(f"    s_cbranch_scc1 {self.L('mfma')}")
        self.gate_stored = False
        if mode != "p2":
            if mode == "fused": self.nonce_publish()
            self.loader_setup()
            self.gate_issue()
            self.loader_k()
            if mode == "fused": self.nonce_fetch()
            A("    s_waitcnt vmcnt(0)")
            A("    s_barrier                            ; K end")
        if mode == "p1":
            A("    s_endpgm")
        else:
            self.b2_setup()
            self.b2_stage(0, R1, False)
            A("    s_waitcnt vmcnt(0)")
            A("    s_barrier")
            self.b2_read_regs()
            A("    s_barrier")
            self.b2_stage(R1, 32, True)
            A("    s_waitcnt vmcnt(0)")
            A("    s_barrier                            ; Y3")
            A(f"    s_branch {self.L('phase2')}")
        A(self.L("mfma") + ":")
        if mode != "p2":
            self.mfma_setup()
            A("    s_cmp_eq_u32 s35, 0")
            A(f"    s_cbranch_scc0 {self.L('ffn')}")
            self.mfma_k(False)
            A("    s_barrier                            ; K end")
            self.att_epilogue()
            A(f"    s_branch {self.L('epidone')}")
            A(self.L("ffn") + ":")
            self.bias_issue()
            self.mfma_k(True)
            A("    s_barrier                            ; K end")
            self.ffn_epilogue()
            A(self.L("epidone") + ":")
            if mode == "fused": self.signal()
        if mode == "p1":
            A("    s_endpgm")
        else:
            A("    s_barrier                            ; Y1")
            self.b2_read_regs()
            A("    s_barrier                            ; Y2")
            if mode == "fused": self.poll()
            A("    s_barrier                            ; Y3")
            A(self.L("phase2") + ":")
            self.phase2()
        A(self.L("end") + ":")
        A("    s_endpgm")
        return A.text()

def main():
    out = sys.argv[1]; kind = sys.argv[2]; opts = sys.argv[3:]
    hdr = open(os.path.join(os.path.dirname(os.path.abspath(__file__)), "header.txt")).read()
    if kind == "two":
        names = [("p1_kernel", "p1"), ("p2_kernel", "p2")]
    elif kind == "p1":
        names = [(NAME + "_kernel", "p1")]
    else:
        names = [(NAME + "_kernel", "fused")]
    txt = hdr
    if len(names) == 1:
        txt += f"; @launch grid=(256,1,1) block=(512,1,1) lds={LDS_BYTES}\n"
    else:
        for n, m in names: txt += f"; @launch kernel={n} grid=(256,1,1) block=(512,1,1) lds={LDS_BYTES}\n"
    txt += '.amdgcn_target "amdgcn-amd-amdhsa--gfx950"\n.text\n'
    tot = 0
    for n, m in names:
        body = Gen(m, opts).build(n)
        body, added = hazard.fix(body)
        tot += added
        txt += body + "\n"
    for n, m in names:
        txt += descriptor(n, 256, 102, 256)
    open(out, "w").write(txt)
    print(f"wrote {out}: {len(txt)} bytes, {tot} nops inserted")

main()
```
